```python
import torch

def _softmax(x, axis=-1):
    return torch.softmax(x, dim=axis)

def _gelu(x):
    return torch.nn.functional.gelu(x, approximate='tanh')

def _silu(x):
    return torch.nn.functional.silu(x)

def _sigmoid(x):
    return torch.sigmoid(x)

def _layernorm(x, axis=-1, eps=1e-05):
    m = x.mean(dim=axis, keepdim=True)
    v = x.var(dim=axis, keepdim=True, unbiased=False)
    return (x - m) / torch.sqrt(v + eps)

def _scatter_add(tgt, idx, src, axis=0):
    return tgt.clone().index_add_(axis, idx, src)

def _segment_sum(src, seg, n):
    out = torch.zeros((n,) + src.shape[1:], dtype=src.dtype)
    return out.index_add_(0, seg, src)

def _pad(x, pw):
    flat = tuple((v for pair in reversed(pw) for v in pair))
    return torch.nn.functional.pad(x, flat)
kernel_name = 'sequential_preLN__spectral_fnet__mixer_gmlp__prompt'

def setup_inputs():

    _w = lambda a: (lambda t: t.to(torch.bfloat16) if t.is_floating_point() else t)(torch.as_tensor(a))

    def _A_setup():
        B, S, D = (1, 2048, 512)
        ns = torch.arange(S)[:, None] * torch.arange(S)[None, :]
        nd = torch.arange(D)[:, None] * torch.arange(D)[None, :]
        Ws_re = torch.cos(-2.0 * torch.pi * ns / S).to(float)
        Ws_im = torch.sin(-2.0 * torch.pi * ns / S).to(float)
        Wd_re = torch.cos(-2.0 * torch.pi * nd / D).to(float)
        Wd_im = torch.sin(-2.0 * torch.pi * nd / D).to(float)
        return {'x': _w((lambda *s: torch.randn(*s, dtype=torch.bfloat16) * 0.05)(B, S, D)), 'dft_seq_re': _w(Ws_re), 'dft_seq_im': _w(Ws_im), 'dft_hid_re': _w(Wd_re), 'dft_hid_im': _w(Wd_im)}
    _A_in = _A_setup()

    def _B_setup():
        B, S, D, F = (1, 2048, 512, 1376)
        Fh = F // 2
        return {'x': _w((lambda *s: torch.randn(*s, dtype=torch.bfloat16) * 0.05)(B, S, D)), 'w_in': _w((lambda *s: torch.randn(*s, dtype=torch.bfloat16) * 1.6)(D, 2 * Fh)), 'w_sp': _w(0.01 * (lambda *s: torch.randn(*s, dtype=torch.bfloat16) * 1.6)(S, S)), 'b_sp': _w(1.0 + 0.01 * (lambda *s: torch.randn(*s, dtype=torch.bfloat16) * 0.8)(S)), 'w_out': _w((lambda *s: torch.randn(*s, dtype=torch.bfloat16) * 0.8)(Fh, D))}
    _B_in = _B_setup()
    return {'A_x': _A_in['x'], 'A_dft_seq_re': _A_in['dft_seq_re'], 'A_dft_seq_im': _A_in['dft_seq_im'], 'A_dft_hid_re': _A_in['dft_hid_re'], 'A_dft_hid_im': _A_in['dft_hid_im'], 'B_x': _B_in['x'], 'B_w_in': _B_in['w_in'], 'B_w_sp': _B_in['w_sp'], 'B_b_sp': _B_in['b_sp'], 'B_w_out': _B_in['w_out']}

def reference(A_x, A_dft_seq_re, A_dft_seq_im, A_dft_hid_re, A_dft_hid_im, B_x, B_w_in, B_w_sp, B_b_sp, B_w_out):

    def _A_ref(x, dft_seq_re, dft_seq_im, dft_hid_re, dft_hid_im):
        a = torch.einsum('bsd,ed->bse', x, dft_hid_re)
        b = torch.einsum('bsd,ed->bse', x, dft_hid_im)
        y = torch.einsum('ts,bse->bte', dft_seq_re, a) - torch.einsum('ts,bse->bte', dft_seq_im, b)
        return y

    def _B_ref(x, w_in, w_sp, b_sp, w_out):
        B, S, D = x.shape
        F = w_in.shape[-1]
        Fh = F // 2
        z = _gelu(torch.einsum('bsd,df->bsf', x, w_in))
        z1 = z[..., :Fh].clone()
        z2 = _layernorm(z[..., Fh:], axis=-1)
        g = torch.einsum('ts,bsf->btf', w_sp, z2) + b_sp[None, :, None]
        return torch.einsum('bsf,fd->bsd', z1 * g, w_out)
    x = A_x
    h = x + _A_ref(_layernorm(x, axis=-1), A_dft_seq_re, A_dft_seq_im, A_dft_hid_re, A_dft_hid_im)
    h2 = h + _B_ref(_layernorm(h, axis=-1), B_w_in, B_w_sp, B_b_sp, B_w_out)
    return h2
```

```python
import sys
from hl import *
BUF = 64 << 20
def gen(body, reps):
    L = []
    A = L.append
    A(f"; @launch grid=(256,1,1) block=(256,1,1) lds=140000")
    A('.amdgcn_target "amdgcn-amd-amdhsa--gfx950"')
    A(".text\n.globl vb_kernel\n.p2align 8\n.type vb_kernel,@function\nvb_kernel:")
    A("s_cmp_ge_u32 s2, 256\ns_cbranch_scc1 L_end")
    A("s_load_dwordx2 s[8:9], s[0:1], 0\ns_load_dwordx2 s[4:5], s[0:1], 8")
    A("v_and_b32 v2, 63, v0\nv_lshrrev_b32 v3, 6, v0\ns_nop 1\nv_readfirstlane_b32 s13, v3")
    A("s_waitcnt lgkmcnt(0)")
    A(f"s_mov_b32 s16, s4\ns_mov_b32 s17, s5\ns_mov_b32 s18, {BUF}\ns_mov_b32 s19, 0x20000")
    A("s_lshl_b32 s14, s13, 14\nv_lshlrev_b32 v1, 3, v2\nv_add_u32 v1, s14, v1\nv_lshlrev_b32 v2, 4, v2")
    A("s_and_b32 s10, s2, 7\ns_lshl_b32 s10, s10, 21\ns_lshl_b32 s11, s13, 18\ns_add_u32 s10, s10, s11")
    A("s_mov_b32 s12, s10")
    for i in range(64):
        A(f"buffer_load_dwordx4 a[{4*i}:{4*i+3}], v2, s[16:19], s12 offen\ns_add_u32 s12, s12, 1024")
        if i % 8 == 7: A("s_waitcnt vmcnt(0)")
    for i in range(16):
        A(f"s_add_u32 m0, s14, {i*1024}\ns_add_u32 s12, s12, 1024\nbuffer_load_dwordx4 v2, s[16:19], s12 offen lds")
    for i in range(8, 128): A(f"v_mov_b32 v{i}, 0")
    A("s_waitcnt vmcnt(0)\ns_sleep 60")
    A("s_mov_b32 s12, s10\ns_mov_b32 m0, s14")
    A("s_barrier")
    A("s_memrealtime s[50:51]\ns_memtime s[40:41]\ns_waitcnt lgkmcnt(0)")
    A(f"s_mov_b32 s20, {reps}")
    A(".p2align 6\nL_loop:")
    A(body)
    A("s_sub_u32 s20, s20, 1\ns_cmp_lg_u32 s20, 0\ns_cbranch_scc1 L_loop")
    A("s_waitcnt vmcnt(0) lgkmcnt(0)\ns_memrealtime s[52:53]\ns_memtime s[42:43]\ns_waitcnt lgkmcnt(0)")
    A("s_sub_u32 s44, s42, s40\ns_sub_u32 s45, s52, s50")
    A("v_mov_b32 v4, s44\nv_mov_b32 v5, s45")
    A("s_lshl_b32 s22, s2, 3\nv_mov_b32 v6, s22")
    A("global_store_dwordx2 v6, v[4:5], s[8:9]")
    A("L_end:\ns_endpgm")
    A('.section .rodata,"a"\n.p2align 6\n.amdhsa_kernel vb_kernel\n.amdhsa_next_free_vgpr 512\n.amdhsa_next_free_sgpr 102\n.amdhsa_accum_offset 256\n.amdhsa_group_segment_fixed_size 0\n.amdhsa_kernarg_size 16\n.amdhsa_user_sgpr_count 2\n.amdhsa_user_sgpr_kernarg_segment_ptr 1\n.amdhsa_system_sgpr_workgroup_id_x 1\n.end_amdhsa_kernel')
    return "\n".join(L) + "\n"
def body(shape, dma, order=0, swap=False, accA=False):
    b = []
    for x in range(8):
        fb = 8 + 16*(x & 1); nb = 8 + 16*((x+1) & 1)
        b.append("s_waitcnt lgkmcnt(0)")
        for m in range(8):
            if shape == 32:
                i, s = divmod(m, 2)
                b.append(f"v_mfma_f32_32x32x16_bf16 v[{64+16*s}:{79+16*s}], v[{fb+4*i}:{fb+4*i+3}], a[{4*(s*32+x*4+i)}:{4*(s*32+x*4+i)+3}], v[{64+16*s}:{79+16*s}]")
                ms = []
            else:
                ms = []
                for h in range(2):
                    q = 2*m + h
                    ks, r = divmod(q, 8)
                    if order == 0: mt, nt = divmod(r, 4)
                    else: nt, mt = divmod(r, 2)
                    if order == 2: r2 = r; nt = (r2 >> 1); mt = (r2 & 1) ^ (nt & 1)
                    A_ = f"v[{fb+4*(ks*2+mt)}:{fb+4*(ks*2+mt)+3}]"; wi = nt*16+x*2+ks
                    if accA: wi = 8 + wi % 56
                    B_ = f"a[{4*wi}:{4*wi+3}]"
                    C_ = f"a[{4*(mt*4+nt)}:{3+4*(mt*4+nt)}]" if accA else f"v[{64+4*(mt*4+nt)}:{67+4*(mt*4+nt)}]"
                    if swap: A_, B_ = B_, A_
                    ms.append(f"v_mfma_f32_16x16x32_bf16 {C_}, {A_}, {B_}, {C_}")
                b.append(ms[0])
            if dma and m % 2 == 0:
                k = m // 2
                if k == 0: b.append(f"s_add_u32 m0, s14, {(x%4)*4096}\ns_add_u32 s12, s12, 4096")
                b.append(f"buffer_load_dwordx4 v2, s[16:19], s12 offen offset:{k*1024} lds")
            if m == 1 and dma: b.append("s_waitcnt vmcnt(9)")
            if 1 <= m < 5:
                i = m - 1; o = ((x+1) % 4)*4096 + i*512
                b.append(f"ds_read_b64_tr_b16 v[{nb+4*i}:{nb+4*i+1}], v1 offset:{o}")
                if ms: b.append(ms[1])
                b.append(f"ds_read_b64_tr_b16 v[{nb+4*i+2}:{nb+4*i+3}], v1 offset:{o+2048}")
            elif ms: b.append(ms[1])
    return "\n".join(b)
GEN = len(sys.argv) > 1
if not GEN:
    out = DeviceBuffer(1 << 20)
    r = np.random.randn(BUF//2).astype(np.float32)
    data = DeviceBuffer.from_numpy((r.view(np.uint32) >> 16).astype(np.uint16))
for reps in (3,):
  for name, bd in (("o1", body(16, True, 1)), ("o1 swap", body(16, True, 1, True)), ("o0", body(16, True, 0)), ("o0 swap", body(16, True, 0, True)), ("o2 snake", body(16, True, 2)), ("o2 swap", body(16, True, 2, True)), ("o1 accA", body(16, True, 1, False, True)), ("o1", body(16, True, 1))):
    co = build(gen(bd, reps), "vb_kernel", 2, "vb")
    if GEN: continue
    k = AsmKernel(co, "vb_kernel")
    res = []
    for it in range(30):
        k.launch((256,1,1), (256,1,1), pack_ptr_kernargs([out.ptr, data.ptr]), 140000); sync()
        o = out.to_numpy(np.uint32, (256, 2))
        res.append((np.median(o[:,0]), np.median(o[:,1])*10))
    c, t = np.median(np.array(res), axis=0)
    print(f"{name:16s} reps={reps}: {c/reps:7.0f} cyc/pass {t/reps:7.0f} ns/pass clock {c/t:.2f} GHz", flush=True)
    k.unload()
```
